```python
import torch

def _softmax(x, axis=-1):
    return torch.softmax(x, dim=axis)
def _gelu(x):
    return torch.nn.functional.gelu(x, approximate="tanh")
def _silu(x):
    return torch.nn.functional.silu(x)
def _sigmoid(x):
    return torch.sigmoid(x)
def _layernorm(x, axis=-1, eps=1e-5):
    m = x.mean(dim=axis, keepdim=True)
    v = x.var(dim=axis, keepdim=True, unbiased=False)
    return (x - m) / torch.sqrt(v + eps)
def _scatter_add(tgt, idx, src, axis=0):
    return tgt.clone().index_add_(axis, idx, src)
def _segment_sum(src, seg, n):
    out = torch.zeros((n,) + src.shape[1:], dtype=src.dtype)
    return out.index_add_(0, seg, src)
def _pad(x, pw):
    flat = tuple(v for pair in reversed(pw) for v in pair)
    return torch.nn.functional.pad(x, flat)

kernel_name = 'standalone__glu_gated_reglu__prompt'

def setup_inputs():

    _w = (lambda a: (lambda t: t.to(torch.bfloat16) if t.is_floating_point() else t)(torch.as_tensor(a)))
    B, S, D, F = 1, 2048, 576, 4608
    return {
        "x": _w((lambda *s: torch.randn(*s, dtype=torch.bfloat16) * 0.05)(B, S, D)),
        "W_gate": _w((lambda *s: torch.randn(*s, dtype=torch.bfloat16) * 0.05)(D, F) * (2.0 / D) ** 0.5),
        "W_up": _w((lambda *s: torch.randn(*s, dtype=torch.bfloat16) * 0.05)(D, F) * (2.0 / D) ** 0.5),
        "W_down": _w((lambda *s: torch.randn(*s, dtype=torch.bfloat16) * 0.05)(F, D) * (1.0 / F) ** 0.5),
    }

def reference(x, W_gate, W_up, W_down):
    gate = torch.einsum("bsd,df->bsf", x, W_gate)
    up = torch.einsum("bsd,df->bsf", x, W_up)
    gate = gate * (lambda x, dt: x.to(dt))(gate > 0, gate.dtype)
    h = gate * up
    return torch.einsum("bsf,fd->bsd", h, W_down)
```

```python
HDR = '''.amdgcn_target "amdgcn-amd-amdhsa--gfx950"
.text
'''
def kernel_begin(name):
    return f'''.globl {name}
.p2align 8
.type {name},@function
{name}:
'''
def kd(name, vgpr=512, sgpr=102, accum=256):
    return f'''.p2align 6
.amdhsa_kernel {name}
  .amdhsa_next_free_vgpr {vgpr}
  .amdhsa_next_free_sgpr {sgpr}
  .amdhsa_accum_offset {accum}
  .amdhsa_group_segment_fixed_size 0
  .amdhsa_kernarg_size 56
  .amdhsa_user_sgpr_count 2
  .amdhsa_user_sgpr_kernarg_segment_ptr 1
  .amdhsa_system_sgpr_workgroup_id_x 1
.end_amdhsa_kernel
'''
KNAME = 'standalone__glu_gated_reglu__prompt_kernel'
class Asm:
    def __init__(self):
        self.lines = []
    def __call__(self, s):
        for l in s.split('\n'):
            l = l.strip()
            if l: self.lines.append(('' if l.endswith(':') else '    ') + l)
    def text(self):
        return '\n'.join(self.lines) + '\n'
def srd(a, dst, base, nbytes):
    a(f's_mov_b32 s{dst}, s{base}')
    a(f's_mov_b32 s{dst+1}, s{base+1}')
    a(f's_mov_b32 s{dst+2}, {nbytes}')
    a(f's_mov_b32 s{dst+3}, 0x00020000')
```

```python
import re, sys
from asmlib import HDR, kernel_begin, kd

class Ins:
    __slots__ = ('t', 'kind', 'tag')
    def __init__(self, t, kind=None, tag=None):
        self.t = t; self.kind = kind; self.tag = tag

class G:
    def __init__(self):
        self.ins = []
        self.ds_q = []
        self.vm_q = []
        self.nid = 0
    def e(self, t):
        for l in t.split('\n'):
            l = l.strip()
            if l: self.ins.append(Ins(l))
    def ds(self, t):
        self.nid += 1
        self.ins.append(Ins(t, 'ds'))
        self.ds_q.append(self.nid)
        return self.nid
    def vm(self, t):
        self.nid += 1
        self.ins.append(Ins(t, 'vm'))
        self.vm_q.append(self.nid)
        return self.nid
    def wait(self, ds_ids=(), vm_ids=()):
        parts = []
        need = [i for i in ds_ids if i in self.ds_q]
        if need:
            pos = max(self.ds_q.index(i) for i in need)
            n = len(self.ds_q) - 1 - pos
            n = min(n, 15)
            self.ds_q = self.ds_q[len(self.ds_q) - n:] if n else []
            parts.append(f'lgkmcnt({n})')
        need = [i for i in vm_ids if i in self.vm_q]
        if need:
            pos = max(self.vm_q.index(i) for i in need)
            n = len(self.vm_q) - 1 - pos
            if n <= 62:
                self.vm_q = self.vm_q[len(self.vm_q) - n:] if n else []
                parts.insert(0, f'vmcnt({n})')
            else:
                n = 62
                self.vm_q = self.vm_q[len(self.vm_q) - n:]
                parts.insert(0, f'vmcnt({n})')
        if parts:
            self.ins.append(Ins('s_waitcnt ' + ' '.join(parts), 'wait'))
    def wait_all(self):
        self.ins.append(Ins('s_waitcnt vmcnt(0) lgkmcnt(0)', 'wait'))
        self.ds_q = []; self.vm_q = []
    def text(self):
        out = []
        for i in self.ins:
            out.append(('' if i.t.endswith(':') else '    ') + i.t)
        return '\n'.join(out) + '\n'

def regs_of(op):
    op = op.strip()
    m = re.fullmatch(r'([vas])\[(\d+):(\d+)\]', op)
    if m: return [(m.group(1), i) for i in range(int(m.group(2)), int(m.group(3)) + 1)]
    m = re.fullmatch(r'([vas])(\d+)', op)
    if m: return [(m.group(1), int(m.group(2)))]
    if op in ('vcc', 'm0', 'exec'): return [('s', op)]
    return []
def split_ops(t):
    parts = t.split(None, 1)
    name = parts[0]
    if len(parts) == 1: return name, []
    ops = re.split(r',\s*', parts[1])
    last = ops[-1].split()
    ops[-1] = last[0]
    return name, ops
def classify(t):
    name, ops = split_ops(t)
    d = dict(name=name, w=set(), r=set(), cls='other', c=set(), ab=set())
    if name.startswith('v_mfma'):
        d['cls'] = 'mfma'
        d['w'] = set(regs_of(ops[0])); d['ab'] = set(regs_of(ops[1]) + regs_of(ops[2])); d['c'] = set(regs_of(ops[3]))
        d['r'] = d['ab'] | d['c']
        d['passes'] = 8 if '32x32' in name else 4
    elif name.startswith('v_cmp'):
        d['cls'] = 'valu'; d['w'] = set(regs_of(ops[0]))
        for o in ops[1:]: d['r'] |= set(regs_of(o))
    elif name.startswith('v_readfirstlane') or name.startswith('v_readlane'):
        d['cls'] = 'valu'; d['w'] = set(regs_of(ops[0])); d['r'] = set(regs_of(ops[1])); d['rfl'] = True
    elif name.startswith('v_permlane'):
        d['cls'] = 'valu'; d['w'] = set(regs_of(ops[0]) + regs_of(ops[1])); d['r'] = set(d['w']); d['perm'] = True
    elif name.startswith('v_'):
        d['cls'] = 'valu'; d['w'] = set(regs_of(ops[0]))
        for o in ops[1:]: d['r'] |= set(regs_of(o))
        if name.startswith('v_fmac') or name.startswith('v_dot2c'): d['r'] |= d['w']
        if name.startswith('v_cndmask') and len(ops) == 3: d['r'] |= {('s', 'vcc')}
        if '_co_' in name:
            d['w'] |= set(regs_of(ops[1]))
    elif name.startswith('ds_read'):
        d['cls'] = 'ds'; d['w'] = set(regs_of(ops[0])); d['r'] = set(regs_of(ops[1]))
    elif name.startswith('ds_write'):
        d['cls'] = 'ds'
        for o in ops: d['r'] |= set(regs_of(o))
    elif name.startswith('buffer_load') or name.startswith('global_load'):
        d['cls'] = 'vmem'
        if ' lds' in t:
            d['lds'] = True
            for o in ops: d['r'] |= set(regs_of(o))
            d['r'] |= {('s', 'm0')}
        else:
            d['w'] = set(regs_of(ops[0]))
            for o in ops[1:]: d['r'] |= set(regs_of(o))
    elif name.startswith('buffer_store') or name.startswith('global_store') or name.startswith('buffer_atomic') or name.startswith('global_atomic'):
        d['cls'] = 'vmem'; d['store'] = True
        for o in ops: d['r'] |= set(regs_of(o))
        if name.startswith('buffer_store'):
            d['sdata'] = set(regs_of(ops[0]))
        else:
            d['sdata'] = set(regs_of(ops[1]))
        d['wide'] = name.endswith('x4') or name.endswith('x3')
    elif name.startswith('s_'):
        d['cls'] = 'salu'
        if name in ('s_waitcnt', 's_barrier', 's_nop', 's_endpgm', 's_branch', 's_sleep', 's_setprio') or name.startswith('s_cbranch') or name.startswith('s_cmp'):
            for o in ops: d['r'] |= set(regs_of(o))
        else:
            if ops: d['w'] = set(regs_of(ops[0]))
            for o in ops[1:]: d['r'] |= set(regs_of(o))
    return d
def states(t):
    name, ops = split_ops(t)
    if name == 's_nop': return int(ops[0]) + 1
    if t.endswith(':'): return 0
    return 1
def check_hazards(ins, fix=True):
    out = []
    info = []
    nfix = 0
    for I in ins:
        t = I.t
        if t.endswith(':'):
            out.append(I); info.append(None); continue
        d = classify(t)
        need = 0
        dist = 0
        for k in range(len(out) - 1, max(-1, len(out) - 40), -1):
            p = info[k]
            if p is None: continue
            req = 0
            pv = {x for x in p['w'] if x[0] in 'va'}
            ps = {x for x in p['w'] if x[0] == 's'}
            if p['cls'] == 'valu':
                if d['cls'] == 'mfma' and (pv & d['r']): req = max(req, 2)
                if d['cls'] == 'vmem' and (ps & d['r']): req = max(req, 5)
                if d.get('rfl') and (pv & d['r']): req = max(req, 1)
                if d.get('perm') and (pv & d['r']): req = max(req, 2)
                if d['cls'] == 'valu' and (ps & d['r']): req = max(req, 2)
                if d['cls'] == 'salu' and (ps & d['r']): req = max(req, 2)
            if p['cls'] == 'mfma':
                n = p['passes']
                full = {8: 12, 4: 8}[n]
                if d['cls'] in ('valu',) and (p['w'] & (d['r'] | d['w'])): req = max(req, full)
                if d['cls'] in ('vmem', 'ds') and (p['w'] & (d['r'] | d['w'])): req = max(req, full)
                if d['cls'] == 'mfma':
                    if p['w'] & d['ab']: req = max(req, full)
                    if (p['w'] & d['c']) and not (p['w'] == d['c'] and p['passes'] == d['passes']): req = max(req, {8: 10, 4: 6}[n])
                    if (p['w'] & d['w']) and not (p['w'] == d['c']):
                        req = max(req, {8: 10, 4: 6}[n])
                if d['cls'] == 'valu' and (p['c'] & d['w']): req = max(req, {8: 7, 4: 3}[n])
            if p['cls'] == 'salu' and ('s', 'm0') in p['w'] and d.get('lds'): req = max(req, 1)
            if p.get('store') and p.get('wide') and d['cls'] == 'valu' and (p['sdata'] & d['w']): req = max(req, 2)
            if p.get('store') and p.get('wide') and d['cls'] in ('ds', 'vmem') and (p['sdata'] & d['w']): req = max(req, 1)
            if req > dist: need = max(need, req - dist)
            dist += states(out[k].t)
            if dist >= 20: break
        if need > 0:
            nfix += 1
            while need > 0:
                n = min(need, 16)
                out.append(Ins(f's_nop {n-1}')); info.append(classify(f's_nop {n-1}'))
                need -= n
        out.append(I); info.append(d)
    return out, nfix
```

```python
import sys
from glib import *
from asmlib import HDR, kernel_begin, kd, KNAME
def gen(shape, reuse, reads=True, total32=972, valu=0):
    g = G(); e = g.e
    e('s_cmp_ge_u32 s2, 256'); e('s_cbranch_scc1 L_done')
    e('s_load_dwordx8 s[4:11], s[0:1], 0')
    e('s_load_dwordx2 s[16:17], s[0:1], 48')
    e('v_and_b32 v240, 63, v0'); e('v_lshrrev_b32 v241, 6, v0'); e('s_nop 0'); e('v_readfirstlane_b32 s36, v241')
    e('s_waitcnt lgkmcnt(0)')
    def srd(dst, b, n):
        e(f's_mov_b32 s{dst}, s{b}'); e(f's_mov_b32 s{dst+1}, s{b+1}'); e(f's_mov_b32 s{dst+2}, {n}'); e(f's_mov_b32 s{dst+3}, 0x00020000')
    srd(20, 4, 2359296); srd(24, 6, 5308416); srd(32, 16, 1 << 20)
    e('v_lshlrev_b32 v1, 4, v240')
    e('s_lshl_b32 s40, s36, 14')
    e('s_lshl_b32 s41, s2, 14')
    e('s_add_u32 s41, s41, s40')
    for k in range(16):
        e(f's_add_u32 m0, s40, {k*1024}')
        e(f's_add_u32 s42, s41, {k*1024}')
        g.vm('buffer_load_dwordx4 v1, s[24:27], s42 offen lds')
    for k in range(36):
        e(f's_add_u32 s42, s41, {k*1024}')
        g.vm(f'buffer_load_dwordx4 a[{4*k}:{4*k+3}], v1, s[20:23], s42 offen')
    g.wait_all()
    e('s_barrier')
    e('v_lshrrev_b32 v243, 5, v240')
    e('v_bfe_u32 v247, v240, 4, 1'); e('v_bfe_u32 v248, v240, 2, 2'); e('v_and_b32 v249, 3, v240'); e('v_and_b32 v250, 2, v248')
    e('v_xor_b32 v251, v247, v250'); e('v_lshlrev_b32 v251, 5, v251'); e('v_lshl_add_u32 v251, v249, 3, v251'); e('v_lshl_add_u32 v251, v248, 7, v251')
    e('v_lshl_add_u32 v10, v243, 10, v251')
    if shape == 16:
        e('v_lshlrev_b32 v10, 3, v240')
    for i in range(16, 144): e(f'v_mov_b32 v{i}, 0')
    nm = total32 if shape == 32 else 2*total32
    body = 144 if shape == 32 else 288
    iters = (nm + body - 1) // body
    e(f's_mov_b32 s59, {iters}')
    e('s_memtime s[60:61]'); e('s_memrealtime s[62:63]'); e('s_waitcnt lgkmcnt(0)')
    e('L_loop:')
    LA = 4; NF = 8
    nfr = body // reuse
    accn = 4 if shape == 32 else 16
    asz = 16 if shape == 32 else 4
    def rd(fi):
        f = 144 + 4*(fi % NF)
        off = (fi * 1024) % 61440
        if reads:
            g.ds(f'ds_read_b64_tr_b16 a[{f}:{f+1}], v10 offset:{off}')
            g.ds(f'ds_read_b64_tr_b16 a[{f+2}:{f+3}], v10 offset:{off+512}')
    for fi in range(LA): rd(fi)
    for fi in range(nfr):
        f = 144 + 4*(fi % NF)
        if reads:
            n = 2*min(LA-1, nfr-1-fi)
            e(f's_waitcnt lgkmcnt({n})')
        for r in range(reuse):
            n = fi*reuse + r
            acc = 16 + asz*(n % accn)
            b = 4*(n % 36)
            nm_ = 'v_mfma_f32_32x32x16_bf16' if shape == 32 else 'v_mfma_f32_16x16x32_bf16'
            e(f'{nm_} v[{acc}:{acc+asz-1}], a[{f}:{f+3}], a[{b}:{b+3}], v[{acc}:{acc+asz-1}]')
            if r == 0 and fi + LA < nfr: rd(fi + LA)
            for v in range(valu if shape == 32 else (valu+1-(n%2))//2): e(f'v_max_f32 v{200+v}, v{210+v}, v{200+v}')
    e('s_sub_u32 s59, s59, 1'); e('s_cmp_lg_u32 s59, 0'); e('s_cbranch_scc1 L_loop')
    e('s_memtime s[70:71]'); e('s_memrealtime s[72:73]'); e('s_waitcnt lgkmcnt(0)')
    e('s_sub_u32 s70, s70, s60'); e('s_sub_u32 s72, s72, s62')
    e('s_lshl_b32 s48, s2, 2'); e('s_add_u32 s48, s48, s36'); e('s_lshl_b32 s48, s48, 5')
    e('s_nop 15')
    e('v_mov_b32 v220, s70'); e('v_mov_b32 v221, s72'); e('v_mov_b32 v222, s62'); e(f'v_mov_b32 v223, {iters*body}')
    e('v_add_f32 v224, v16, v32'); e('v_add_f32 v225, v48, v64'); e('v_mov_b32 v226, 0'); e('v_mov_b32 v227, 0')
    e('v_mov_b32 v228, s48')
    e('v_cmp_eq_u32 vcc, 0, v240'); e('s_and_saveexec_b64 s[50:51], vcc')
    e('buffer_store_dwordx4 v[220:223], v228, s[32:35], 0 offen')
    e('buffer_store_dwordx4 v[224:227], v228, s[32:35], 0 offen offset:16')
    e('s_waitcnt vmcnt(0)')
    e('L_done:'); e('s_endpgm')
    return '; @launch grid=(256,1,1) block=(256,1,1) lds=147456\n' + HDR + kernel_begin(KNAME) + g.text() + '.section .rodata,"a"\n' + kd(KNAME, 512, 102, 256)
if __name__ == '__main__':
    for shape, reuse, reads in ((32,1,True),(32,2,True),(32,1,False),(16,2,True),(16,4,True),(16,2,False),(32,4,True),(16,8,True)):
        open(f'mb7_{shape}_{reuse}_{int(reads)}.s','w').write(gen(shape, reuse, reads))
```

```python
import mb7, re
from asmlib import *
def gen(shape, reuse, reads, iters):
    t = mb7.gen(shape, reuse, reads, total32=144*iters)
    t = t.replace('L_loop:\n', 'L_loop:\n    s_memrealtime s[76:77]\n    s_waitcnt lgkmcnt(0)\n    s_sub_u32 s78, s76, s62\n    s_mov_b32 m0, s59\n    s_nop 1\n    v_writelane_b32 v230, s78, m0\n')
    t = t.replace('    v_cmp_eq_u32 vcc, 0, v240\n', '    s_lshl_b32 s49, s48, 3\n    s_add_u32 s49, s49, 0x10000\n    v_lshlrev_b32 v231, 2, v240\n    v_add_u32 v231, s49, v231\n    buffer_store_dword v230, v231, s[32:35], 0 offen\n    v_cmp_eq_u32 vcc, 0, v240\n')
    return t
open('mb8_32_1.s','w').write(gen(32,1,True,20))
open('mb8_16_4.s','w').write(gen(16,4,True,20))
```
